```python
import torch

def _softmax(x, axis=-1):
    return torch.softmax(x, dim=axis)
def _gelu(x):
    return torch.nn.functional.gelu(x, approximate="tanh")
def _silu(x):
    return torch.nn.functional.silu(x)
def _sigmoid(x):
    return torch.sigmoid(x)
def _layernorm(x, axis=-1, eps=1e-5):
    m = x.mean(dim=axis, keepdim=True)
    v = x.var(dim=axis, keepdim=True, unbiased=False)
    return (x - m) / torch.sqrt(v + eps)
def _scatter_add(tgt, idx, src, axis=0):
    return tgt.clone().index_add_(axis, idx, src)
def _segment_sum(src, seg, n):
    out = torch.zeros((n,) + src.shape[1:], dtype=src.dtype)
    return out.index_add_(0, seg, src)
def _pad(x, pw):
    flat = tuple(v for pair in reversed(pw) for v in pair)
    return torch.nn.functional.pad(x, flat)

kernel_name = 'recurrent_scan__gqa_block_cached__swiglu_ffn__decode'

def setup_inputs():

    _w = (lambda a: (lambda t: t.to(torch.bfloat16) if t.is_floating_point() else t)(torch.as_tensor(a)))
    def _A_setup():
        B, Sq, D = 4, 1, 512
        Hq, Hkv, Sk, Dh = 32, 8, 4096, 128
        assert Hq % Hkv == 0, (Hq, Hkv)
        return {
            "x": _w((lambda *s: torch.randn(*s, dtype=torch.bfloat16) * 0.05)(B, Sq, D)),
            "k_cache": _w((lambda *s: torch.randn(*s, dtype=torch.bfloat16) * 1.6)(B, Hkv, Sk, Dh)),
            "v_cache": _w((lambda *s: torch.randn(*s, dtype=torch.bfloat16) * 0.2)(B, Hkv, Sk, Dh)),
            "wq": _w((lambda *s: torch.randn(*s, dtype=torch.bfloat16) * 1.6)(D, Hq * Dh) * (D ** -0.5)),
            "wo": _w((lambda *s: torch.randn(*s, dtype=torch.bfloat16) * 0.2)(Hq * Dh, D) * ((Hq * Dh) ** -0.5)),
        }
    _A_in = _A_setup()

    def _B_setup():
        B, S, D, F = 4, 1, 512, 1792
        return {
            "x": _w((lambda *s: torch.randn(*s, dtype=torch.bfloat16) * 0.05)(B, S, D)),
            "w_gate": _w((lambda *s: torch.randn(*s, dtype=torch.bfloat16) * 0.1)(D, F)),
            "w_up": _w((lambda *s: torch.randn(*s, dtype=torch.bfloat16) * 0.1)(D, F)),
            "w_down": _w((lambda *s: torch.randn(*s, dtype=torch.bfloat16) * 0.1)(F, D)),
        }
    _B_in = _B_setup()

    return {
        "A_x": _A_in["x"],
        "A_k_cache": _A_in["k_cache"],
        "A_v_cache": _A_in["v_cache"],
        "A_wq": _A_in["wq"],
        "A_wo": _A_in["wo"],
        "B_x": _B_in["x"],
        "B_w_gate": _B_in["w_gate"],
        "B_w_up": _B_in["w_up"],
        "B_w_down": _B_in["w_down"],
    }

def reference(A_x, A_k_cache, A_v_cache, A_wq, A_wo, B_x, B_w_gate, B_w_up, B_w_down):
    def _A_ref(x, k_cache, v_cache, wq, wo):
        B, Sq, D = x.shape
        Hq, Dh = 32, 128
        Hkv = k_cache.shape[1]
        rep = Hq // Hkv
        q = (lambda x, *d: x.permute(*d))((x @ wq).reshape(B, Sq, Hq, Dh), 0, 2, 1, 3)
        k = (lambda x, n, axis: torch.repeat_interleave(x, n, dim=axis))(k_cache, rep, axis=1)
        v = (lambda x, n, axis: torch.repeat_interleave(x, n, dim=axis))(v_cache, rep, axis=1)
        scores = torch.einsum("bhqd,bhkd->bhqk", q, k) * (Dh ** -0.5)
        p = _softmax(scores, axis=-1)
        o = torch.einsum("bhqk,bhkd->bhqd", p, v)
        return (lambda x, *d: x.permute(*d))(o, 0, 2, 1, 3).reshape(B, Sq, Hq * Dh) @ wo

    def _B_ref(x, w_gate, w_up, w_down):
        g = _silu(x @ w_gate)
        u = x @ w_up
        return (g * u) @ w_down

    x = A_x
    xn = _layernorm(x, axis=-1)
    s = _A_ref(xn, A_k_cache, A_v_cache, A_wq, A_wo)
    g = _silu(_B_ref(xn, B_w_gate, B_w_up, B_w_down))
    return x + s * g
```

```python
import re

REG_RE = re.compile(r'^(-?)(abs\()?([vsa])(\d+)\)?$')
RANGE_RE = re.compile(r'^(-?)([vsa])\[(\d+):(\d+)\]$')

TRANS = ("v_exp_f32", "v_log_f32", "v_rcp_f32", "v_rsq_f32", "v_sqrt_f32", "v_sin_f32", "v_cos_f32", "v_rcp_iflag_f32")

def regs_of(tok):
    tok = tok.strip()
    m = REG_RE.match(tok)
    if m:
        return {(m.group(3), int(m.group(4)))}
    m = RANGE_RE.match(tok)
    if m:
        return {(m.group(2), i) for i in range(int(m.group(3)), int(m.group(4)) + 1)}
    if tok == "vcc":
        return {("s", "vcc")}
    if tok == "exec":
        return {("s", "exec")}
    if tok == "m0":
        return {("s", "m0")}
    return set()

class Ins:
    __slots__ = ("text", "op", "ops", "mods", "kind", "vdef", "vuse", "sdef", "suse", "dpp", "trans", "permlane", "readlane",
                 "mfma_c", "mfma_ab", "wide_store", "ldsdma", "comment")
    def __init__(self, text):
        self.text = text
        body = text.split(";")[0].strip()
        parts = body.split(None, 1)
        self.op = parts[0]
        rest = parts[1] if len(parts) > 1 else ""
        toks, depth, cur = [], 0, ""
        for ch in rest:
            if ch == "[": depth += 1
            if ch == "]": depth -= 1
            if ch == "," and depth == 0:
                toks.append(cur.strip()); cur = ""
            else:
                cur += ch
        if cur.strip(): toks.append(cur.strip())
        mods = ""
        if toks:
            last = toks[-1].split(None, 1)
            toks[-1] = last[0]
            if len(last) > 1: mods = last[1]
        self.ops, self.mods = toks, mods
        self.vdef, self.vuse, self.sdef, self.suse = set(), set(), set(), set()
        self.dpp = self.trans = self.permlane = self.readlane = self.wide_store = self.ldsdma = False
        self.mfma_c, self.mfma_ab = set(), set()
        self.classify()

    def _use(self, toks):
        for t in toks:
            for k in regs_of(t):
                (self.vuse if k[0] in "va" else self.suse).add(k)
    def _def(self, toks):
        for t in toks:
            for k in regs_of(t):
                (self.vdef if k[0] in "va" else self.sdef).add(k)

    def classify(self):
        op, o = self.op, self.ops
        if op.startswith("v_mfma"):
            self.kind = "mfma"
            self._def(o[:1]); self._use(o[1:])
            self.mfma_ab = regs_of(o[1]) | regs_of(o[2]); self.mfma_c = regs_of(o[3])
        elif op.startswith("v_"):
            self.kind = "valu"
            base = op.replace("_e32", "").replace("_e64", "").replace("_dpp", "").replace("_sdwa", "")
            self.trans = base in TRANS
            self.dpp = op.endswith("_dpp") or any(m in self.mods for m in ("quad_perm", "row_shr", "row_shl", "row_ror", "row_bcast", "row_mirror", "row_half_mirror", "wave_"))
            if base.startswith("v_permlane"):
                self.permlane = True
                self._def(o[:2]); self._use(o[:2])
            elif base in ("v_readfirstlane_b32", "v_readlane_b32"):
                self.readlane = True
                self._def(o[:1]); self._use(o[1:])
            elif base.startswith("v_cmp"):
                self._def(o[:1]); self._use(o[1:])
            elif base in ("v_add_co_u32", "v_sub_co_u32", "v_addc_co_u32", "v_subb_co_u32"):
                self._def(o[:2]); self._use(o[2:])
            elif base in ("v_fmac_f32", "v_dot2c_f32_bf16", "v_writelane_b32", "v_pk_fmac_f16"):
                self._def(o[:1]); self._use(o)
            elif base == "v_cndmask_b32":
                self._def(o[:1]); self._use(o[1:])
                if len(o) == 3: self.suse.add(("s", "vcc"))
            elif base == "v_nop":
                pass
            else:
                self._def(o[:1]); self._use(o[1:])
            if self.dpp:
                self._use(o[:1])
        elif op.startswith("ds_"):
            self.kind = "ds"
            if op.startswith("ds_read") or op.startswith("ds_bpermute") or op.startswith("ds_swizzle") or op.startswith("ds_permute"):
                self._def(o[:1]); self._use(o[1:])
            elif "_rtn" in op:
                self._def(o[:1]); self._use(o[1:])
            else:
                self._use(o)
        elif op.startswith("buffer_") or op.startswith("global_"):
            self.kind = "vmem"
            lds = (" lds" in (" " + self.mods)) or "_lds_" in op
            self.ldsdma = lds
            if op in ("buffer_wbl2", "buffer_inv"):
                pass
            elif "load" in op and not lds:
                self._def(o[:1]); self._use(o[1:])
            elif "load" in op and lds:
                self._use(o); self.suse.add(("s", "m0"))
            elif "store" in op:
                self._use(o)
                self.wide_store = op.endswith("x4") or op.endswith("x3")
            elif "atomic" in op:
                self._use(o)
                if "sc0" in self.mods: self._def(o[:1])
            else:
                raise ValueError("unknown vmem " + self.text)
        elif op.startswith("s_"):
            self.kind = "salu"
            if op.startswith("s_cmp") or op.startswith("s_bitcmp"):
                self._use(o)
            elif op in ("s_waitcnt", "s_nop", "s_barrier", "s_sleep", "s_setprio", "s_endpgm", "s_branch") or op.startswith("s_cbranch"):
                if op in ("s_cbranch_vccz", "s_cbranch_vccnz"): self.suse.add(("s", "vcc"))
                if op in ("s_cbranch_execz", "s_cbranch_execnz"): self.suse.add(("s", "exec"))
            elif op.startswith("s_load") or op in ("s_memtime", "s_memrealtime", "s_getpc_b64"):
                self._def(o[:1]); self._use(o[1:])
            elif op.endswith("saveexec_b64"):
                self._def(o[:1]); self._use(o[1:]); self.sdef.add(("s", "exec")); self.suse.add(("s", "exec"))
            else:
                self._def(o[:1]); self._use(o[1:])
        else:
            raise ValueError("unknown op " + self.text)

    def store_data(self):
        if self.op.startswith("buffer_store"): return regs_of(self.ops[0])
        if self.op.startswith("global_store"): return regs_of(self.ops[1])
        return set()


class Asm:
    def __init__(self):
        self.items = []
        self.nlabel = 0
    def __call__(self, text):
        for line in text.split("\n"):
            line = line.strip()
            if not line: continue
            if line.startswith(";"):
                self.items.append(("raw", line)); continue
            if line.endswith(":") and " " not in line:
                self.items.append(("label", line[:-1])); continue
            self.items.append(("ins", Ins(line)))
    def raw(self, text): self.items.append(("raw", text))
    def label(self, name): self.items.append(("label", name))
    def newlabel(self, p="L"):
        self.nlabel += 1
        return f"{p}_{self.nlabel}"
    def reset(self):
        self.items.append(("reset",))

    def finalize(self):
        out = []
        hist = []
        def states_since(idx):
            n = 0
            for h in hist[idx + 1:]:
                n += h[1]
            return n
        nnop = 0
        for it in self.items:
            if it[0] == "raw": out.append(it[1]); continue
            if it[0] == "label": out.append(it[1] + ":"); continue
            if it[0] == "reset":
                out.append("s_nop 7"); out.append("s_nop 3")
                hist = []
                continue
            ins = it[1]
            need = 0
            lo = max(0, len(hist) - 24)
            for idx in range(len(hist) - 1, lo - 1, -1):
                p = hist[idx][0]
                if p is None: continue
                d = states_since(idx)
                if d >= 20: break
                req = hazard(p, ins)
                if req > d: need = max(need, req - d)
            while need > 0:
                k = min(need, 8)
                out.append(f"s_nop {k-1}")
                hist.append((None, k)); need -= k; nnop += 1
            out.append(ins.text)
            w = 1
            if ins.op == "s_nop": w = int(ins.ops[0]) + 1
            hist.append((ins, w))
            if ins.op in ("s_branch", "s_endpgm"):
                hist = []
        self.nnop = nnop
        return "\n".join(out) + "\n"

def mfma_passes(ins):
    op = ins.op
    if "16x16x32" in op or "16x16x16" in op: return 4
    if "32x32x16" in op or "32x32x8" in op: return 8
    if "4x4x4" in op: return 2
    raise ValueError(op)

def hazard(p, c):
    req = 0
    if p.kind == "valu":
        vd = p.vdef
        if vd:
            if c.kind == "mfma" and vd & c.vuse: req = max(req, 2)
            if c.kind == "valu":
                if c.dpp and vd & c.vuse: req = max(req, 2)
                if c.permlane and vd & c.vuse: req = max(req, 2)
                if c.readlane and vd & c.vuse: req = max(req, 1)
                if p.trans and not c.trans and vd & c.vuse: req = max(req, 1)
                if p.trans and c.trans and vd & c.vuse: req = max(req, 1)
        sd = p.sdef
        if sd:
            if c.kind == "valu" and sd & c.suse: req = max(req, 4 if c.op.startswith("v_readlane") or c.op.startswith("v_writelane") else 2)
            if c.kind == "vmem" and sd & c.suse: req = max(req, 5)
            if c.kind == "salu" and sd & c.suse: req = max(req, 1)
            if c.kind == "mfma" and ("s", "exec") in sd: req = max(req, 4)
    elif p.kind == "mfma":
        n = mfma_passes(p)
        big = {2: 5, 4: 8, 8: 12}[n]
        d = p.vdef
        if c.kind == "mfma":
            if d & c.mfma_ab: req = max(req, big)
            if d & c.mfma_c:
                if d == c.mfma_c and mfma_passes(c) == n: req = max(req, 2 if n == 2 else 0)
                else: req = max(req, {2: 4, 4: 6, 8: 10}[n])
        elif c.kind in ("valu", "ds", "vmem"):
            if d & (c.vuse | c.vdef): req = max(req, big)
        if c.kind == "valu" and p.mfma_c & c.vdef: req = max(req, {2: 1, 4: 3, 8: 7}[n])
    elif p.kind == "vmem":
        if p.wide_store and c.kind == "valu" and p.store_data() & c.vdef: req = max(req, 2)
        if p.wide_store and c.kind in ("ds", "vmem") and p.store_data() & c.vdef: req = max(req, 1)
    elif p.kind == "salu":
        if ("s", "m0") in p.sdef and c.ldsdma: req = max(req, 1)
        if ("s", "exec") in p.sdef and c.kind == "valu" and c.dpp: req = max(req, 1)
    return req
```

```python
import sys, os
sys.path.insert(0, os.path.dirname(os.path.abspath(__file__)))
from asmlib import Asm

KNAME = "recurrent_scan__gqa_block_cached__swiglu_ffn__decode_kernel"

SLOT = 8192
MB = 131072
WQ = MB
XN = MB + 16384
XS = 1040
QL = MB + 20608
QS = 320
HL = MB + 21888
HS = 464
PF = MB + 23808
OL = MB + 27904
WL = MB + 28032
MX = MB + 28288
LS = MB + 28352
FB = MB + 28416
F_LAND = 0
F_XN, F_QP, F_F1, F_Q, F_MX, F_P, F_W = 256, 260, 264, 268, 272, 276, 280
F_KD = 288
F_VD = 304
GU = 14 * SLOT
WOB = 8 * SLOT
LDS_BYTES = 163840

QBUF = 0x10000
HBUF = 0x20000
YBUF = 0x30000
STAT = 0x50000
IN1 = 0x80000
IN2 = 0x180000
DBG = 0x400000

sWAVE = "s3"
sX, sR, sB, sSP = "s32", "s33", "s34", "s35"
sT32, sT8, sT88, sTO = "s36", "s37", "s38", "s39"
sMASK = "s68"
sSEL = "s69"
sP = "s70"
sT = ["s72", "s73", "s74", "s75", "s76", "s77", "s78", "s79"]
SPIN_LIMIT = 1 << 18

class Cfg:
    W = 24
    pol_kv = "nt"
    pol_w = "nt"
    pol_wo = "nt"
    stamps = False
    ack1 = True
    ack2 = False
    poll_sleep = 0
    codepf = False
    def __init__(self, **kw):
        for k, v in kw.items():
            assert hasattr(Cfg, k), k
            setattr(self, k, v)

def v(i, n=1):
    return f"v{i}" if n == 1 else f"v[{i}:{i+n-1}]"
def s(i, n=1):
    return f"s{i}" if n == 1 else f"s[{i}:{i+n-1}]"

def schedule():
    Q = []
    thr = {}
    def add(kind, idx, pre=None):
        Q.append((kind, idx, pre))
    for i in range(4): add("WQ", i)
    thr["WQ"] = len(Q)
    for i in range(4): add("GU", i)
    thr["GU"] = len(Q)
    def addK(G):
        pre = ("F1",) if G == 14 else None
        add("K", 2 * G, pre); add("K", 2 * G + 1)
        thr[("K", G)] = len(Q)
    for G in range(4): addK(G)
    add("WD", 0, ("QP",)); add("WD", 1)
    thr["WD"] = len(Q)
    for G in range(4, 16): addK(G)
    def addV(G):
        pre = ("KD", G & 3, (G >> 2) + 1) if G < 8 else ("VD", G - 7)
        add("V", 2 * G, pre); add("V", 2 * G + 1)
        thr[("V", G)] = len(Q)
    for G in range(8): addV(G)
    for i in range(16):
        sl = 8 + i // 2
        add("WO", i, ("KD", sl & 3, (sl >> 2) + 1) if i % 2 == 0 else None)
    thr["WO"] = len(Q)
    for G in range(8, 16): addV(G)
    return Q, thr

class Gen:
    def __init__(self, cfg):
        self.c = cfg
        self.a = Asm()
        self.Q, self.thr = schedule()
        self.nstamp = 0

    def stamp(self, slot):
        if self.c.stamps:
            self.a(f"s_memrealtime s[{80+2*slot}:{81+2*slot}]")

    def stamp_flush(self, role, n):
        if not self.c.stamps: return
        a = self.a
        a("s_waitcnt lgkmcnt(0)")
        a("s_mov_b64 exec, -1")
        for i in range(n):
            a(f"v_writelane_b32 v2, s{80+2*i}, {i}")
        a(f"v_writelane_b32 v2, {sTO}, 15")
        a(f"s_lshl_b32 s72, s2, 9")
        a(f"s_add_u32 s72, s72, {DBG + role*64}")
        a("v_lshlrev_b32 v3, 2, v0")
        a("v_add_u32 v3, s72, v3")
        a("s_mov_b64 exec, 0xffff")
        a("global_store_dword v3, v2, s[30:31]")
        a("s_mov_b64 exec, -1")

    def spin_lds(self, off, thr, vt, sreg, vbase, sleep=1, b128min=False):
        a = self.a
        L = a.newlabel("spin"); D = a.newlabel("done")
        a(f"{L}:")
        if b128min:
            a(f"ds_read_b128 {v(vt,4)}, {vbase} offset:{off}")
            a("s_waitcnt lgkmcnt(0)")
            a(f"v_min_u32 {v(vt)}, {v(vt)}, {v(vt+1)}")
            a(f"v_min3_u32 {v(vt)}, {v(vt)}, {v(vt+2)}, {v(vt+3)}")
        else:
            a(f"ds_read_b32 {v(vt)}, {vbase} offset:{off}")
            a("s_waitcnt lgkmcnt(0)")
        a(f"v_readfirstlane_b32 {sreg}, {v(vt)}")
        a(f"s_cmp_ge_u32 {sreg}, {thr}")
        a(f"s_cbranch_scc1 {D}")
        if sleep: a(f"s_sleep {sleep}")
        a(f"s_add_u32 {sTO}, {sTO}, 1")
        a(f"s_cmp_lt_u32 {sTO}, {SPIN_LIMIT}")
        a(f"s_cbranch_scc1 {L}")
        a(f"{D}:")

    def wait_land(self, thr, vt, vbase, scache, sleep=1):
        a = self.a
        D = a.newlabel("have")
        a(f"s_cmp_ge_u32 {scache}, {thr}")
        a(f"s_cbranch_scc1 {D}")
        self.spin_lds(F_LAND, thr, vt, scache, vbase, sleep=sleep)
        a(f"{D}:")

    def set_flag(self, off, val, vt, vbase):
        a = self.a
        a(f"v_mov_b32 {v(vt)}, {val}")
        a(f"ds_write_b32 {vbase}, {v(vt)} offset:{off}")

    def arrive(self, off, vone, vbase):
        a = self.a
        a("s_mov_b64 exec, 1")
        a(f"ds_add_u32 {vbase}, {vone} offset:{off}")
        a("s_mov_b64 exec, -1")

    def poll(self, loads, checks, sleep=None, tmp="s[72:73]", tmp2="s[74:75]"):
        a = self.a
        L = a.newlabel("poll"); D = a.newlabel("pdone")
        a(f"{L}:")
        for l in loads: a(l)
        a("s_waitcnt vmcnt(0)")
        first = True
        for ck in checks:
            dst = "vcc" if first else tmp
            if ck[0] == "t32":
                a(f"v_cmp_ne_u32 {dst}, {sT32}, {v(ck[1])}")
            else:
                a(f"v_perm_b32 {v(ck[3])}, {v(ck[1])}, {v(ck[2])}, {sSEL}")
                a(f"v_cmp_ne_u32 {dst}, {sT88}, {v(ck[3])}")
            if not first:
                a(f"s_or_b64 vcc, vcc, {tmp}")
            first = False
        a("s_cmp_eq_u64 vcc, 0")
        a(f"s_cbranch_scc1 {D}")
        sl = self.c.poll_sleep if sleep is None else sleep
        if sl: a(f"s_sleep {sl}")
        a(f"s_add_u32 {sTO}, {sTO}, 1")
        a(f"s_cmp_lt_u32 {sTO}, {SPIN_LIMIT}")
        a(f"s_cbranch_scc1 {L}")
        a(f"{D}:")

    def rnd_pair(self, pk, x0, x1):
        a = self.a
        a(f"v_cvt_pk_bf16_f32 {v(pk)}, {v(x0)}, {v(x1)}")
        a(f"v_lshlrev_b32 {v(x0)}, 16, {v(pk)}")
        a(f"v_and_b32 {v(x1)}, 0xffff0000, {v(pk)}")
    def rnd_one(self, x, pk=None):
        a = self.a
        a(f"v_cvt_pk_bf16_f32 {v(x)}, {v(x)}, {v(x)}")
        a(f"v_lshlrev_b32 {v(x)}, 16, {v(x)}")

    def red_row(self, op, x, rors):
        a = self.a
        for r in rors:
            a(f"{op}_dpp {v(x)}, {v(x)}, {v(x)} row_ror:{r} row_mask:0xf bank_mask:0xf")
    def red_x16(self, op, x, t):
        a = self.a
        a(f"v_mov_b32 {v(t)}, {v(x)}")
        a(f"v_permlane16_swap_b32 {v(x)}, {v(t)}")
        a(f"{op} {v(x)}, {v(x)}, {v(t)}")
    def red_x32(self, op, x, t):
        a = self.a
        a(f"v_mov_b32 {v(t)}, {v(x)}")
        a(f"v_permlane32_swap_b32 {v(x)}, {v(t)}")
        a(f"{op} {v(x)}, {v(x)}, {v(t)}")

    def prologue(self):
        a = self.a
        a("s_cmp_ge_u32 s2, 256")
        a("s_cbranch_scc0 L_start")
        a("s_endpgm")
        a("L_start:")
        a("s_load_dwordx16 s[8:23], s[0:1], 0")
        a("s_load_dwordx8 s[24:31], s[0:1], 64")
        self.stamp(0)
        a("v_lshrrev_b32 v1, 6, v0")
        a("v_and_b32 v0, 63, v0")
        a(f"v_readfirstlane_b32 {sWAVE}, v1")
        a(f"s_and_b32 {sX}, s2, 7")
        a(f"s_lshr_b32 {sR}, s2, 3")
        a(f"s_lshr_b32 {sB}, {sR}, 3")
        a(f"s_and_b32 {sSP}, {sR}, 7")
        a(f"s_lshl_b32 {sP}, {sX}, 3")
        a(f"s_add_u32 {sP}, {sP}, {sSP}")
        a(f"s_mov_b32 {sTO}, 0")
        a(f"s_mov_b32 {sMASK}, 0xffffff00")
        a(f"s_mov_b32 {sSEL}, 0x0c0c0400")
        a(f"s_cmp_eq_u32 {sWAVE}, 4")
        a("s_cbranch_scc1 L_loader")
        a(f"s_cmp_eq_u32 {sWAVE}, 5")
        a("s_cbranch_scc1 L_service")

    def epoch(self):
        self.a("s_load_dword s71, s[30:31], 0")
    def epoch_tags(self):
        a = self.a
        a(f"s_mul_i32 {sT32}, s71, 0x9E3779B1")
        a(f"s_add_u32 {sT32}, {sT32}, 0x7F4A7C15")
        a(f"s_mul_i32 {sT8}, s71, 0x85EBCA6B")
        a(f"s_lshr_b32 {sT8}, {sT8}, 24")
        a(f"s_lshl_b32 {sT88}, {sT8}, 8")
        a(f"s_or_b32 {sT88}, {sT88}, {sT8}")

    def loader(self):
        a, c = self.a, self.c
        a("L_loader:")
        a.reset()
        a("s_setprio 3")
        vWQ, vG, vWD, vK, vV, vWO, vFB, vP, vT = 2, 3, 4, 6, 10, 12, 20, 21, 24
        a("v_lshrrev_b32 v30, 1, v0")
        a("v_and_b32 v31, 1, v0")
        a("v_lshlrev_b32 v31, 4, v31")
        a(f"v_lshlrev_b32 v{vWQ}, 13, v30")
        a(f"v_add_u32 v{vWQ}, v{vWQ}, v31")
        a(f"v_lshlrev_b32 v{vWD}, 10, v30")
        a(f"v_add_u32 v{vWD}, v{vWD}, v31")
        a(f"v_mul_u32_u24 v{vG}, 3584, v0")
        a("v_lshrrev_b32 v30, 4, v0")
        a("v_and_b32 v31, 15, v0")
        a("v_lshlrev_b32 v32, 8, v30")
        for j in range(4):
            a(f"v_add_u32 v33, {4*j}, v30")
            a("v_xor_b32 v33, v33, v31")
            a(f"v_lshl_add_u32 v{vK+j}, v33, 4, v32")
        for j in range(2):
            a("v_lshlrev_b32 v33, 1, v30")
            a(f"v_add_u32 v33, {8*j}, v33")
            a("v_xor_b32 v33, v33, v31")
            a(f"v_lshl_add_u32 v{vV+j}, v33, 4, v32")
        for f in range(8):
            a(f"v_xor_b32 v33, {2*f}, v0")
            a(f"v_lshlrev_b32 v{vWO+f}, 4, v33")
        a(f"v_mov_b32 v{vFB}, {FB}")
        a(f"v_lshlrev_b32 v33, 2, v0")
        a(f"v_add_u32 v22, {FB}, v33")
        a("s_waitcnt lgkmcnt(0)")
        K, V, WQs, G, U, WD, WO = 40, 44, 48, 52, 56, 60, 64
        a(f"s_lshl_b32 s72, {sB}, 3"); a(f"s_add_u32 s72, s72, {sX}"); a("s_lshl_b32 s72, s72, 20")
        a(f"s_lshl_b32 s73, {sSP}, 17"); a("s_add_u32 s72, s72, s73")
        for base, p in ((K, 10), (V, 12)):
            a(f"s_add_u32 s{base}, s{p}, s72"); a(f"s_addc_u32 s{base+1}, s{p+1}, 0")
            a(f"s_mov_b32 s{base+2}, 0x20000"); a(f"s_mov_b32 s{base+3}, 0x20000")
        a(f"s_lshl_b32 s72, {sX}, 10"); a(f"s_lshl_b32 s73, {sR}, 5"); a("s_add_u32 s72, s72, s73")
        a(f"s_add_u32 s{WQs}, s14, s72"); a(f"s_addc_u32 s{WQs+1}, s15, 0")
        a(f"s_sub_u32 s{WQs+2}, 0x400000, s72"); a(f"s_mov_b32 s{WQs+3}, 0x20000")
        a(f"s_mul_i32 s72, {sX}, 448"); a(f"s_lshl_b32 s73, {sR}, 4"); a("s_add_u32 s72, s72, s73")
        a("s_sub_u32 s73, 1835008, s72")
        a(f"s_cmp_lt_u32 {sR}, 28"); a("s_cselect_b32 s73, s73, 0")
        for base, p in ((G, 20), (U, 22)):
            a(f"s_add_u32 s{base}, s{p}, s72"); a(f"s_addc_u32 s{base+1}, s{p+1}, 0")
            a(f"s_mov_b32 s{base+2}, s73"); a(f"s_mov_b32 s{base+3}, 0x20000")
        a(f"s_mul_i32 s72, {sX}, {224*1024}"); a(f"s_lshl_b32 s73, {sR}, 5"); a("s_add_u32 s72, s72, s73")
        a(f"s_add_u32 s{WD}, s24, s72"); a(f"s_addc_u32 s{WD+1}, s25, 0")
        a(f"s_sub_u32 s{WD+2}, {224*1024}, s73"); a(f"s_mov_b32 s{WD+3}, 0x20000")
        a(f"s_lshl_b32 s72, {sX}, 19"); a(f"s_lshl_b32 s73, {sSP}, 16"); a("s_add_u32 s72, s72, s73")
        a(f"s_add_u32 s{WO}, s16, s72"); a(f"s_addc_u32 s{WO+1}, s17, 0")
        a(f"s_mov_b32 s{WO+2}, 0x10000"); a(f"s_mov_b32 s{WO+3}, 0x20000")
        self.stamp(1)
        W = c.W
        nq = len(self.Q)
        barrier_done = False
        def ld(voff, srd, soff, ldsaddr, pol, imm=0, setm0=True):
            if setm0: a(f"s_mov_b32 m0, {ldsaddr}")
            if soff is not None: a(f"s_mov_b32 s76, {soff}")
            o = f" offset:{imm}" if imm else ""
            pl = f" {pol}" if pol else ""
            a(f"buffer_load_dwordx4 v{voff}, s[{srd}:{srd+3}], s76 offen{o}{pl} lds")
        for q, (kind, idx, pre) in enumerate(self.Q):
            if pre is not None:
                if not barrier_done:
                    raise RuntimeError("precondition before barrier")
                if pre[0] == "F1": self.spin_lds(F_F1, 1, vT, "s77", f"v{vFB}")
                elif pre[0] == "QP": self.spin_lds(F_QP, 1, vT, "s77", f"v{vFB}")
                elif pre[0] == "KD": self.spin_lds(F_KD + 4 * pre[1], pre[2], vT, "s77", f"v{vFB}")
                elif pre[0] == "VD": self.spin_lds(F_VD, pre[1], vT, "s77", f"v{vFB}", b128min=True)
            if kind == "WQ":
                for j in range(4):
                    i = idx * 4 + j
                    ld(vWQ, WQs, i * 32 * 8192, WQ + i * 1024, c.pol_w)
            elif kind == "GU":
                for j in range(4):
                    i = idx * 4 + j
                    srd = G if i < 8 else U
                    ld(vG, srd, (i % 8) * 64 * 3584, GU + i * 1024, c.pol_w)
            elif kind == "WD":
                for j in range(4):
                    i = idx * 4 + j
                    if i == 7:
                        a(f"s_mov_b32 s{WD+2}, 0")
                        ld(vWD, WD, 0, WQ + i * 1024, c.pol_w)
                    else:
                        ld(vWD, WD, i * 32768, WQ + i * 1024, c.pol_w)
            elif kind == "K":
                for j in range(4):
                    ld(vK + j, K, idx * 4096 if j == 0 else None, idx * 4096, c.pol_kv, imm=j * 1024, setm0=(j == 0))
            elif kind == "V":
                G_ = idx // 2
                ldsb = (G_ % 8) * SLOT + (idx % 2) * 4096
                for j in range(4):
                    ld(vV + (j & 1), V, idx * 4096 if j == 0 else None, ldsb, c.pol_kv, imm=j * 1024, setm0=(j == 0))
            elif kind == "WO":
                for j in range(4):
                    f = 4 * (idx & 1) + j
                    ld(vWO + f, WO, idx * 4096 if j == 0 else None, WOB + idx * 4096, c.pol_wo, imm=j * 1024, setm0=(j == 0))
            landed = q + 2 - W // 4
            if not barrier_done and (landed > 0 or (q + 1 < nq and self.Q[q + 1][2] is not None)):
                a("s_barrier"); barrier_done = True
            if landed > 0:
                a(f"s_waitcnt vmcnt({W-4})")
                a(f"v_mov_b32 v{vP}, {landed}")
                a(f"ds_write_b32 v22, v{vP}")
            if q == self.thr[("K", 15)] - 1: self.stamp(2)
            if q == self.thr[("V", 7)] - 1: self.stamp(3)
        self.stamp(4)
        for k in range(W // 4 - 2, -1, -1):
            a(f"s_waitcnt vmcnt({4*k})")
            a(f"v_mov_b32 v{vP}, {nq - k}")
            a(f"ds_write_b32 v22, v{vP}")
        self.stamp(5)
        self.stamp_flush(4, 6)
        a("s_waitcnt lgkmcnt(0)")
        a("s_endpgm")

    def gemv(self, nsteps, vA, aoff, astep, aoff2, vB, bstep8, acc, regs):
        a = self.a
        def issue(st, buf):
            ra = regs + buf * 8
            a(f"ds_read_b64_tr_b16 {v(ra,2)}, {vA} offset:{aoff + st*astep}")
            a(f"ds_read_b64_tr_b16 {v(ra+2,2)}, {vA} offset:{aoff + st*astep + aoff2}")
            a(f"ds_read2_b64 {v(ra+4,4)}, {vB} offset0:{st*bstep8} offset1:{st*bstep8+4}")
        NB = 4
        for st in range(min(NB, nsteps)): issue(st, st)
        for st in range(nsteps):
            rem = min(nsteps - 1 - st, NB - 1)
            a(f"s_waitcnt lgkmcnt({3*rem})")
            ra = regs + (st % NB) * 8
            cc = "0" if st == 0 else v(acc, 4)
            a(f"v_mfma_f32_16x16x32_bf16 {v(acc,4)}, {v(ra,4)}, {v(ra+4,4)}, {cc}")
            if st + NB < nsteps: issue(st + NB, st % NB)

    def service(self):
        a, c = self.a, self.c
        a("L_service:")
        a.reset()
        vFB, vT, vOne = 2, 4, 3
        a("v_lshlrev_b32 v8, 2, v0")
        a(f"v_add_u32 v8, {FB}, v8")
        a("v_mov_b32 v9, 0")
        a("ds_write_b32 v8, v9")
        a("ds_write_b32 v8, v9 offset:256")
        a(f"v_mov_b32 v{vFB}, {FB}")
        a(f"v_mov_b32 v{vOne}, 1")
        a("s_waitcnt lgkmcnt(0)")
        a("s_barrier")
        self.epoch()
        vN, vG, vBn = 10, 11, 12
        a(f"v_and_b32 v{vN}, 15, v0")
        a(f"v_lshrrev_b32 v{vG}, 4, v0")
        a(f"v_and_b32 v{vBn}, 3, v0")
        vCol, vXf = 13, 14
        a(f"s_lshr_b32 s72, {sP}, 4"); a("s_lshl_b32 s72, s72, 7")
        a(f"s_and_b32 s73, {sP}, 15"); a("s_lshl_b32 s73, s73, 2"); a("s_add_u32 s72, s72, s73")
        a("v_lshrrev_b32 v15, 5, v0"); a("v_lshlrev_b32 v15, 6, v15")
        a(f"v_add_u32 v15, v15, v{vBn}")
        a(f"v_add_u32 v{vCol}, s72, v15")
        a(f"s_lshl_b32 s72, {sB}, 9")
        a(f"v_add_u32 v15, s72, v{vCol}")
        a("v_lshlrev_b32 v16, 1, v15")
        vOutOff = 16
        a(f"global_load_ushort v{vXf}, v{vOutOff}, s[8:9]")
        a(f"v_mov_b32 v17, {IN1}"); a(f"v_mov_b32 v18, {IN2 + 0xff000}")
        a("global_load_dword v19, v17, s[30:31] sc1")
        a("global_load_dword v19, v18, s[30:31] sc1")
        vAq, vBx, vAg, vBh = 20, 21, 22, 23
        a(f"v_lshlrev_b32 v{vAq}, 3, v0"); a(f"v_add_u32 v{vAq}, {WQ}, v{vAq}")
        a(f"v_mul_u32_u24 v{vBx}, {XS}, v{vBn}"); a(f"v_lshl_add_u32 v{vBx}, v{vG}, 3, v{vBx}"); a(f"v_add_u32 v{vBx}, {XN}, v{vBx}")
        a(f"v_mul_u32_u24 v{vBh}, {HS}, v{vBn}"); a(f"v_lshl_add_u32 v{vBh}, v{vG}, 3, v{vBh}"); a(f"v_add_u32 v{vBh}, {HL}, v{vBh}")
        a("v_lshrrev_b32 v24, 2, v0"); a("v_lshlrev_b32 v24, 4, v24")
        a("v_and_b32 v25, 1, v0"); a("v_lshl_add_u32 v24, v25, 3, v24")
        a("v_bfe_u32 v25, v0, 1, 1"); a(f"v_lshl_add_u32 v24, v25, 13, v24")
        a(f"v_add_u32 v{vAg}, {GU}, v24")
        a("s_waitcnt lgkmcnt(0)")
        self.epoch_tags()
        vTag, vT8 = 26, 27
        a(f"v_mov_b32 v{vTag}, {sT32}"); a(f"v_mov_b32 v{vT8}, {sT8}")
        ACC, REGS = 32, 40
        sL = "s78"
        a(f"s_mov_b32 {sL}, 0")
        self.spin_lds(F_XN, 4, vT, "s77", f"v{vFB}")
        self.wait_land(self.thr["WQ"], vT, f"v{vFB}", sL)
        self.stamp(1)
        self.gemv(16, f"v{vAq}", 0, 1024, 512, f"v{vBx}", 8, ACC, REGS)
        self.set_flag(F_QP, 1, vT, f"v{vFB}")
        a(f"s_lshl_b32 s72, {sX}, 11"); a(f"s_lshl_b32 s73, {sR}, 6"); a("s_add_u32 s72, s72, s73"); a(f"s_add_u32 s72, s72, {QBUF}")
        a(f"v_lshlrev_b32 v28, 14, v{vBn}"); a(f"v_lshl_add_u32 v28, v{vG}, 4, v28"); a("v_add_u32 v28, s72, v28")
        a(f"v_cvt_pk_bf16_f32 v36, v{ACC}, v{ACC+1}")
        a(f"v_cvt_pk_bf16_f32 v38, v{ACC+2}, v{ACC+3}")
        a(f"v_mov_b32 v37, v{vTag}"); a(f"v_mov_b32 v39, v{vTag}")
        a("s_mov_b32 exec_lo, 0x000f000f"); a("s_mov_b32 exec_hi, 0x000f000f")
        a("global_store_dwordx4 v28, v[36:39], s[30:31] sc1")
        a("s_mov_b64 exec, -1")
        self.stamp(2)
        self.wait_land(self.thr["GU"], vT, f"v{vFB}", sL)
        self.gemv(16, f"v{vAg}", 0, 512, 256, f"v{vBx}", 8, ACC, REGS)
        self.set_flag(F_F1, 1, vT, f"v{vFB}")
        self.rnd_pair(36, ACC, ACC + 1); self.rnd_pair(37, ACC + 2, ACC + 3)
        for r in range(4):
            a(f"v_permlane32_swap_b32 v{ACC+r}, v{REGS+r}")
        for r in range(4):
            a(f"v_mul_f32 v{REGS+4+r}, 0xbfb8aa3b, v{ACC+r}")
        for r in range(4): a(f"v_exp_f32 v{REGS+4+r}, v{REGS+4+r}")
        for r in range(4): a(f"v_add_f32 v{REGS+4+r}, 1.0, v{REGS+4+r}")
        for r in range(4): a(f"v_rcp_f32 v{REGS+4+r}, v{REGS+4+r}")
        for r in range(4): a(f"v_mul_f32 v{ACC+r}, v{ACC+r}, v{REGS+4+r}")
        self.rnd_pair(36, ACC, ACC + 1); self.rnd_pair(37, ACC + 2, ACC + 3)
        for r in range(4): a(f"v_mul_f32 v{ACC+r}, v{ACC+r}, v{REGS+r}")
        a(f"v_cvt_pk_bf16_f32 v36, v{ACC}, v{ACC+1}")
        a(f"v_cvt_pk_bf16_f32 v38, v{ACC+2}, v{ACC+3}")
        a(f"v_mov_b32 v37, v{vTag}"); a(f"v_mov_b32 v39, v{vTag}")
        a(f"s_mul_i32 s72, {sX}, 896"); a(f"s_lshl_b32 s73, {sR}, 5"); a("s_add_u32 s72, s72, s73"); a(f"s_add_u32 s72, s72, {HBUF}")
        a(f"v_lshlrev_b32 v28, 13, v{vBn}"); a(f"v_lshl_add_u32 v28, v{vG}, 4, v28"); a("v_add_u32 v28, s72, v28")
        Lskip = a.newlabel("noffn")
        a(f"s_cmp_ge_u32 {sR}, 28"); a(f"s_cbranch_scc1 {Lskip}")
        a("s_mov_b32 exec_lo, 0x000f000f"); a("s_mov_b32 exec_hi, 0")
        a("global_store_dwordx4 v28, v[36:39], s[30:31] sc1")
        a("s_mov_b64 exec, -1")
        a(f"{Lskip}:")
        self.stamp(3)
        a(f"s_lshl_b32 s72, {sB}, 14"); a(f"s_lshl_b32 s73, {sX}, 11"); a("s_add_u32 s72, s72, s73"); a(f"s_add_u32 s72, s72, {QBUF}")
        a("v_lshlrev_b32 v28, 4, v0"); a("v_add_u32 v28, s72, v28")
        self.poll(["global_load_dwordx4 v[40:43], v28, s[30:31] sc1", "global_load_dwordx4 v[44:47], v28, s[30:31] offset:1024 sc1"],
                  [("t32", 41), ("t32", 43), ("t32", 45), ("t32", 47)])
        a("v_lshrrev_b32 v29, 5, v0"); a(f"v_mul_u32_u24 v29, {QS}, v29")
        a("v_and_b32 v30, 31, v0"); a("v_lshl_add_u32 v29, v30, 3, v29"); a(f"v_add_u32 v29, {QL}, v29")
        a("ds_write2_b32 v29, v40, v42 offset0:0 offset1:1")
        a(f"ds_write2_b32 v29, v44, v46 offset0:{2*QS//4} offset1:{2*QS//4+1}")
        self.set_flag(F_Q, 1, vT, f"v{vFB}")
        self.stamp(4)
        a(f"s_mul_i32 s72, {sX}, 896"); a(f"s_add_u32 s72, s72, {HBUF}")
        a("v_lshlrev_b32 v28, 4, v0"); a("v_add_u32 v28, s72, v28")
        a("v_add_u32 v29, 0x2000, v28"); a("v_add_u32 v30, 0x4000, v28"); a("v_add_u32 v31, 0x6000, v28")
        a("s_mov_b32 exec_hi, 0x00ffffff")
        self.poll([f"global_load_dwordx4 v[{40+4*i}:{43+4*i}], v{28+i}, s[30:31] sc1" for i in range(4)],
                  [("t32", 41 + 2 * i) for i in range(8)])
        a(f"v_lshlrev_b32 v28, 3, v0"); a(f"v_add_u32 v28, {HL}, v28")
        a(f"v_add_u32 v29, {2*HS}, v28")
        for i in range(4):
            a(f"ds_write2_b32 v{28 + i//2}, v{40+4*i}, v{42+4*i} offset0:{(i%2)*HS//4} offset1:{(i%2)*HS//4+1}")
        a("s_mov_b64 exec, -1")
        self.wait_land(self.thr["WD"], vT, f"v{vFB}", sL)
        self.gemv(7, f"v{vAq}", 0, 1024, 512, f"v{vBh}", 8, ACC, REGS)
        a(f"s_lshl_b32 s72, {sX}, 14"); a(f"s_lshl_b32 s73, {sR}, 7"); a("s_add_u32 s72, s72, s73"); a(f"s_add_u32 s72, s72, {YBUF}")
        a(f"v_lshlrev_b32 v28, 12, v{vBn}"); a(f"v_lshl_add_u32 v28, v{vG}, 5, v28"); a("v_add_u32 v28, s72, v28")
        for r in range(4):
            a(f"v_and_or_b32 v{40+2*r}, v{ACC+r}, {sMASK}, v{vT8}")
            a(f"v_mov_b32 v{41+2*r}, v{vTag}")
        a("s_mov_b32 exec_lo, 0x000f000f"); a("s_mov_b32 exec_hi, 0x000f000f")
        a("global_store_dwordx4 v28, v[40:43], s[30:31] sc1")
        a("global_store_dwordx4 v28, v[44:47], s[30:31] offset:16 sc1")
        a("s_mov_b64 exec, -1")
        self.stamp(5)
        self.spin_lds(F_P, 4, vT, "s77", f"v{vFB}")
        a(f"v_lshlrev_b32 v28, 2, v{vBn}"); a(f"v_add_u32 v28, {MX}, v28")
        for w in range(4):
            a(f"ds_read_b32 v{48+w}, v28 offset:{w*16}")
            a(f"ds_read_b32 v{52+w}, v28 offset:{LS-MX+w*16}")
        a("s_waitcnt lgkmcnt(0)")
        a("v_max_f32 v48, v48, v49"); a("v_max3_f32 v48, v48, v50, v51")
        a("v_add_f32 v52, v52, v53"); a("v_add_f32 v54, v54, v55"); a("v_add_f32 v52, v52, v54")
        a(f"v_and_or_b32 v40, v48, {sMASK}, v{vT8}"); a(f"v_mov_b32 v41, v{vTag}")
        a(f"v_and_or_b32 v42, v52, {sMASK}, v{vT8}"); a(f"v_mov_b32 v43, v{vTag}")
        a(f"s_lshl_b32 s72, {sB}, 3"); a(f"s_add_u32 s72, s72, {sX}"); a("s_lshl_b32 s79, s72, 9")
        a(f"s_lshl_b32 s73, {sSP}, 4"); a("s_add_u32 s72, s79, s73"); a(f"s_add_u32 s72, s72, {STAT}")
        a(f"v_lshlrev_b32 v28, 7, v{vBn}"); a("v_add_u32 v28, s72, v28")
        a("s_mov_b64 exec, 0xf")
        a("global_store_dwordx4 v28, v[40:43], s[30:31] sc1")
        a("s_mov_b64 exec, -1")
        self.stamp(6)
        a("v_bfe_u32 v28, v0, 2, 3"); a("v_lshlrev_b32 v28, 14, v28")
        a(f"v_lshl_add_u32 v28, v{vCol}, 3, v28")
        a(f"s_lshl_b32 s72, {sB}, 12"); a(f"s_add_u32 s72, s72, {YBUF}"); a("v_add_u32 v28, s72, v28")
        a("v_mov_b32 v42, v0")
        self.poll(["global_load_dwordx2 v[40:41], v28, s[30:31] sc1"], [("t32", 41), ("t8", 40, 40, 42)])
        self.red_row("v_add_f32", 40, [4, 8])
        self.red_x16("v_add_f32", 40, 41)
        self.rnd_one(40)
        a("v_mul_f32 v41, 0xbfb8aa3b, v40"); a("v_exp_f32 v41, v41"); a("v_add_f32 v41, 1.0, v41"); a("v_rcp_f32 v41, v41")
        vGate = 30
        a(f"v_mul_f32 v{vGate}, v40, v41"); self.rnd_one(vGate)
        a(f"v_lshlrev_b32 v{vXf}, 16, v{vXf}")
        a(f"s_lshr_b32 s72, {sSP}, 1"); a("s_lshl_b32 s72, s72, 7"); a("s_add_u32 s72, s72, s79"); a(f"s_add_u32 s72, s72, {STAT}")
        a("v_lshrrev_b32 v28, 3, v0"); a("v_lshlrev_b32 v28, 4, v28"); a("v_add_u32 v28, s72, v28")
        self.poll(["global_load_dwordx4 v[40:43], v28, s[30:31] sc1"], [("t32", 41), ("t32", 43), ("t8", 40, 42, 44)])
        a("v_and_b32 v40, 0xffff0000, v40")
        a("v_mov_b32 v44, v40")
        self.red_row("v_max_f32", 44, [8]); self.red_x16("v_max_f32", 44, 45); self.red_x32("v_max_f32", 44, 45)
        a("v_sub_f32 v40, v40, v44"); a("v_mul_f32 v40, 0x3fb8aa3b, v40"); a("v_exp_f32 v40, v40")
        a("v_mul_f32 v44, v40, v42")
        self.red_row("v_add_f32", 44, [8]); self.red_x16("v_add_f32", 44, 45); self.red_x32("v_add_f32", 44, 45)
        a("v_rcp_f32 v45, v44")
        a("v_mul_f32 v46, v40, v45")
        a("v_fma_f32 v47, -v46, v44, v40"); a("v_fma_f32 v46, v47, v45, v46")
        a("v_lshlrev_b32 v28, 2, v0"); a(f"v_add_u32 v28, {WL}, v28")
        a("ds_write_b32 v28, v46")
        self.set_flag(F_W, 1, vT, f"v{vFB}")
        self.stamp(7)
        a(f"s_lshl_b32 s72, {sB}, 6"); a(f"s_add_u32 s72, s72, {sP}"); a("s_lshl_b32 s72, s72, 12"); a(f"s_add_u32 s72, s72, {IN2}")
        a("v_lshlrev_b32 v28, 4, v0"); a("v_add_u32 v28, s72, v28")
        a("s_waitcnt lgkmcnt(0)")
        a("s_barrier")
        self.stamp(8)
        self.poll([f"global_load_dwordx4 v[{40+4*i}:{43+4*i}], v28, s[30:31] offset:{1024*i} sc1" for i in range(4)],
                  [ck for i in range(4) for ck in (("t32", 41 + 4 * i), ("t32", 43 + 4 * i), ("t8", 40 + 4 * i, 42 + 4 * i, 56))])
        self.stamp(9)
        a("v_add_f32 v40, v40, v44"); a("v_add_f32 v42, v42, v46"); a("v_add_f32 v48, v48, v52"); a("v_add_f32 v50, v50, v54")
        a("v_add_f32 v40, v40, v48"); a("v_add_f32 v42, v42, v50")
        a("v_permlane32_swap_b32 v40, v42"); a("v_add_f32 v40, v40, v42")
        self.red_x16("v_add_f32", 40, 41)
        self.red_row("v_add_f32", 40, [8, 4])
        self.rnd_one(40)
        a(f"v_mul_f32 v40, v40, v{vGate}"); self.rnd_one(40)
        a(f"v_add_f32 v40, v40, v{vXf}")
        a("v_cvt_pk_bf16_f32 v40, v40, v40")
        a("s_mov_b32 exec_lo, 0xf"); a("s_mov_b32 exec_hi, 0xf")
        a(f"global_store_short v{vOutOff}, v40, s[26:27]")
        Le = a.newlabel("noepoch")
        a("s_cmp_lg_u32 s2, 0"); a(f"s_cbranch_scc1 {Le}")
        a("s_mov_b64 exec, 1")
        a("v_mov_b32 v41, 0")
        a(f"global_store_dword v41, v{vTag}, s[30:31]")
        a(f"{Le}:")
        self.stamp(10) if False else None
        self.stamp_flush(5, 10)
        a("s_endpgm")

    def compute(self):
        a, c = self.a, self.c
        thr = self.thr
        vFB, vOne, vT = 2, 3, 4
        a("s_nop 3")
        a(f"s_lshl_b32 s72, {sWAVE}, 10")
        a("v_lshlrev_b32 v8, 4, v0"); a("v_add_u32 v9, s72, v8")
        a("s_waitcnt lgkmcnt(0)")
        a("global_load_dwordx4 v[12:15], v9, s[8:9]")
        self.epoch()
        a(f"v_mov_b32 v{vFB}, {FB}"); a(f"v_mov_b32 v{vOne}, 1")
        vN, vG = 10, 11
        a(f"v_and_b32 v{vN}, 15, v0"); a(f"v_lshrrev_b32 v{vG}, 4, v0")
        a("s_barrier")
        X = 16
        a("s_waitcnt vmcnt(0)")
        for i in range(4):
            a(f"v_lshlrev_b32 v{X+2*i}, 16, v{12+i}"); a(f"v_and_b32 v{X+2*i+1}, 0xffff0000, v{12+i}")
        a(f"v_add_f32 v24, v{X}, v{X+1}"); a(f"v_add_f32 v25, v{X+2}, v{X+3}"); a(f"v_add_f32 v26, v{X+4}, v{X+5}"); a(f"v_add_f32 v27, v{X+6}, v{X+7}")
        a("v_add_f32 v24, v24, v25"); a("v_add_f32 v26, v26, v27"); a("v_add_f32 v24, v24, v26")
        self.red_row("v_add_f32", 24, [8, 4, 2, 1]); self.red_x16("v_add_f32", 24, 25); self.red_x32("v_add_f32", 24, 25)
        a("v_mul_f32 v24, 0x3b000000, v24")
        for i in range(8): a(f"v_sub_f32 v{32+i}, v{X+i}, v24")
        a("v_mul_f32 v25, v32, v32"); a("v_mul_f32 v26, v33, v33")
        for i in range(2, 8, 2):
            a(f"v_fmac_f32 v25, v{32+i}, v{32+i}"); a(f"v_fmac_f32 v26, v{33+i}, v{33+i}")
        a("v_add_f32 v25, v25, v26")
        self.red_row("v_add_f32", 25, [8, 4, 2, 1]); self.red_x16("v_add_f32", 25, 26); self.red_x32("v_add_f32", 25, 26)
        a("v_mul_f32 v25, 0x3b000000, v25")
        self.rnd_pair(26, 24, 25)
        a("v_add_f32 v25, 0x3727c5ac, v25"); self.rnd_one(25)
        a("v_sqrt_f32 v25, v25"); self.rnd_one(25)
        a("v_rcp_f32 v27, v25")
        for i in range(8): a(f"v_sub_f32 v{32+i}, v{X+i}, v24")
        for i in range(0, 8, 2): self.rnd_pair(26, 32 + i, 33 + i)
        for i in range(8): a(f"v_mul_f32 v{X+i}, v{32+i}, v27")
        for i in range(8): a(f"v_fma_f32 v{40+i}, -v{X+i}, v25, v{32+i}")
        for i in range(8): a(f"v_fmac_f32 v{X+i}, v{40+i}, v27")
        for i in range(4): a(f"v_cvt_pk_bf16_f32 v{12+i}, v{X+2*i}, v{X+2*i+1}")
        a(f"s_mul_i32 s72, {sWAVE}, {XS}"); a(f"s_add_u32 s72, s72, {XN}")
        a("v_add_u32 v9, s72, v8")
        a("ds_write_b128 v9, v[12:15]")
        self.arrive(F_XN, f"v{vOne}", f"v{vFB}")
        self.stamp(1)
        a("s_waitcnt lgkmcnt(0)")
        self.epoch_tags()
        vTag, vT8 = 8, 9
        a(f"v_mov_b32 v{vTag}, {sT32}"); a(f"v_mov_b32 v{vT8}, {sT8}")
        vKA = 12
        a(f"v_xor_b32 v16, v{vG}, v{vN}"); a("v_lshlrev_b32 v16, 4, v16"); a(f"v_lshl_add_u32 v16, v{vN}, 8, v16")
        a(f"s_lshl_b32 s72, {sWAVE}, 13"); a("v_add_u32 v16, s72, v16")
        a(f"v_mov_b32 v{vKA}, v16")
        for st in range(1, 4): a(f"v_xor_b32 v{vKA+st}, {st<<6}, v16")
        vQA = 16
        a(f"v_and_b32 v17, 3, v{vN}"); a(f"v_mul_u32_u24 v{vQA}, {QS}, v17"); a(f"v_lshl_add_u32 v{vQA}, v{vG}, 4, v{vQA}"); a(f"v_add_u32 v{vQA}, {QL}, v{vQA}")
        vH = 17
        sL = "s78"
        a(f"s_mov_b32 {sL}, 0")
        QF, KF, SC = 20, 36, 68
        self.spin_lds(F_Q, 1, vT, "s77", f"v{vFB}")
        for st in range(4): a(f"ds_read_b128 {v(QF+4*st,4)}, v{vQA} offset:{st*64}")
        self.stamp(2)
        for gi in range(4):
            if gi == 2:
                for st in range(4): a(f"v_add_u32 v{vKA+st}, 0x10000, v{vKA+st}")
            t0, t1, t2, t3 = (thr[("K", w + 4 * gi)] for w in range(4))
            if (t1 - t0, t2 - t1, t3 - t2) == (2, 2, 2):
                a(f"s_lshl_b32 s79, {sWAVE}, 1"); a(f"s_add_u32 s79, s79, {t0}")
            else:
                raise RuntimeError("uneven K thresholds")
            self.wait_land("s79", vT, f"v{vFB}", sL)
            base = (gi & 1) * 32768
            for u in range(2):
                for st in range(4):
                    a(f"ds_read_b128 {v(KF+16*u+4*st,4)}, v{vKA+st} offset:{base + u*4096}")
            for u in range(2):
                a(f"s_waitcnt lgkmcnt({4 if u == 0 else 0})")
                for st in range(4):
                    d = SC + 8 * gi + 4 * u
                    cc = "0" if st == 0 else v(d, 4)
                    a(f"v_mfma_f32_16x16x32_bf16 {v(d,4)}, {v(KF+16*u+4*st,4)}, {v(QF+4*st,4)}, {cc}")
            a(f"s_lshl_b32 s72, {sWAVE}, 2"); a(f"s_add_u32 s72, s72, {FB + F_KD}")
            a(f"v_mov_b32 v5, s72"); a(f"v_mov_b32 v6, {gi+1}")
            a("ds_write_b32 v5, v6")
        self.stamp(3)
        for i in range(0, 32, 2):
            x0, x1 = SC + i, SC + i + 1
            self.rnd_pair(KF + (i // 2) % 8, x0, x1)
        for i in range(32): a(f"v_mul_f32 v{SC+i}, 0x3db504f3, v{SC+i}")
        for i in range(0, 32, 2):
            self.rnd_pair(KF + (i // 2) % 8, SC + i, SC + i + 1)
        a(f"v_max3_f32 v36, v{SC}, v{SC+1}, v{SC+2}")
        a(f"v_max3_f32 v37, v{SC+3}, v{SC+4}, v{SC+5}")
        for i in range(6, 30, 4):
            a(f"v_max3_f32 v36, v36, v{SC+i}, v{SC+i+1}"); a(f"v_max3_f32 v37, v37, v{SC+i+2}, v{SC+i+3}")
        a(f"v_max3_f32 v36, v36, v{SC+30}, v{SC+31}")
        a("v_max_f32 v36, v36, v37")
        self.red_x16("v_max_f32", 36, 37); self.red_x32("v_max_f32", 36, 37)
        a(f"s_lshl_b32 s72, {sWAVE}, 4"); a(f"s_add_u32 s72, s72, {MX}")
        a(f"v_lshl_add_u32 v38, v{vH}, 2, s72")
        a("ds_write_b32 v38, v36")
        self.arrive(F_MX, f"v{vOne}", f"v{vFB}")
        self.spin_lds(F_MX, 4, vT, "s77", f"v{vFB}", sleep=0)
        a(f"v_lshlrev_b32 v39, 2, v{vH}"); a(f"v_add_u32 v39, {MX}, v39")
        for w in range(4): a(f"ds_read_b32 v{40+w}, v39 offset:{w*16}")
        a("s_waitcnt lgkmcnt(0)")
        a("v_max_f32 v40, v40, v41"); a("v_max3_f32 v40, v40, v42, v43")
        a("s_mov_b32 s72, 0x3fb8aa3b")
        a("v_mul_f32 v40, s72, v40")
        for i in range(32): a(f"v_fma_f32 v{SC+i}, v{SC+i}, s72, -v40")
        for i in range(32): a(f"v_exp_f32 v{SC+i}, v{SC+i}")
        a(f"v_add_f32 v41, v{SC}, v{SC+1}"); a(f"v_add_f32 v42, v{SC+2}, v{SC+3}")
        for i in range(4, 32, 2):
            a(f"v_add_f32 v{41 + (i//2)%2}, v{41 + (i//2)%2}, v{SC+i}")
            a(f"v_add_f32 v{41 + (i//2)%2}, v{41 + (i//2)%2}, v{SC+i+1}")
        a("v_add_f32 v41, v41, v42")
        self.red_x16("v_add_f32", 41, 42); self.red_x32("v_add_f32", 41, 42)
        a(f"ds_write_b32 v38, v41 offset:{LS-MX}")
        for gi in range(4):
            for k in range(4):
                a(f"v_cvt_pk_bf16_f32 v{KF+4*gi+k}, v{SC+8*gi+2*k}, v{SC+8*gi+2*k+1}")
        a(f"v_lshlrev_b32 v32, 6, v{vG}"); a(f"v_lshl_add_u32 v32, v{vN}, 4, v32")
        a(f"s_lshl_b32 s72, {sWAVE}, 8"); a(f"s_add_u32 s72, s72, {PF}"); a("v_add_u32 v33, s72, v32")
        a("s_mov_b32 exec_lo, 0x000f000f"); a("s_mov_b32 exec_hi, 0x000f000f")
        for gi in range(4): a(f"ds_write_b128 v33, {v(KF+4*gi,4)} offset:{gi*1024}")
        a("s_mov_b64 exec, -1")
        self.arrive(F_P, f"v{vOne}", f"v{vFB}")
        self.stamp(4)
        vVA0, vVA1 = 12, 13
        a("v_lshrrev_b32 v14, 2, v0"); a("v_and_b32 v15, 7, v14")
        a(f"s_lshl_b32 s72, {sWAVE}, 1"); a("v_xor_b32 v15, s72, v15"); a("v_lshlrev_b32 v15, 5, v15")
        a("v_lshl_add_u32 v15, v14, 8, v15"); a("v_and_b32 v14, 3, v0"); a(f"v_lshl_add_u32 v{vVA0}, v14, 3, v15")
        a(f"v_xor_b32 v{vVA1}, 32, v{vVA0}")
        a(f"v_lshlrev_b32 v34, 6, v{vG}"); a(f"v_lshl_add_u32 v34, v{vH}, 4, v34"); a(f"v_add_u32 v34, {PF}, v34")
        PFR = 100
        self.spin_lds(F_P, 4, vT, "s77", f"v{vFB}", sleep=0)
        for G in range(16):
            a(f"ds_read_b128 {v(PFR+4*G,4)}, v34 offset:{G*256}")
            if G % 8 == 7: a("s_waitcnt lgkmcnt(0)")
        self.stamp(5)
        vA1, vP1, vA2, vOW, vOR, vWB = 14, 15, 16, 18, 19, 20
        a(f"s_lshl_b32 s72, {sB}, 3"); a(f"s_add_u32 s72, s72, {sX}"); a("s_lshl_b32 s79, s72, 15")
        a(f"s_add_u32 s79, s79, {IN1}")
        a(f"s_lshr_b32 s73, {sWAVE}, 1"); a("s_lshl_b32 s73, s73, 12"); a(f"s_lshl_b32 s74, {sSP}, 9"); a("s_add_u32 s73, s73, s74")
        a(f"s_and_b32 s74, {sWAVE}, 1"); a("s_lshl_b32 s74, s74, 8"); a("s_add_u32 s73, s73, s74"); a("s_add_u32 s73, s73, s79")
        a(f"v_lshlrev_b32 v{vA1}, 13, v{vH}")
        a(f"v_lshrrev_b32 v28, 2, v{vN}")
        a("v_lshrrev_b32 v29, 1, v28"); a(f"v_lshl_add_u32 v{vA1}, v29, 7, v{vA1}")
        a("v_and_b32 v29, 1, v28"); a(f"v_lshl_add_u32 v{vA1}, v29, 4, v{vA1}")
        a(f"v_lshl_add_u32 v{vA1}, v{vG}, 5, v{vA1}"); a(f"v_add_u32 v{vA1}, s73, v{vA1}")
        a(f"s_lshl_b32 s73, {sSP}, 12"); a(f"s_lshl_b32 s74, {sWAVE}, 7"); a("s_add_u32 s73, s73, s74"); a("s_add_u32 s73, s73, s79")
        a("v_lshrrev_b32 v28, 3, v0"); a(f"v_lshlrev_b32 v{vP1}, 9, v28"); a("v_and_b32 v28, 7, v0")
        a(f"v_lshl_add_u32 v{vP1}, v28, 4, v{vP1}"); a(f"v_add_u32 v{vP1}, s73, v{vP1}")
        a(f"s_lshr_b32 s73, {sWAVE}, 1"); a("s_lshl_b32 s73, s73, 6"); a(f"s_and_b32 s74, {sWAVE}, 1"); a("s_lshl_b32 s74, s74, 3")
        a("s_add_u32 s73, s73, s74"); a(f"s_add_u32 s73, s73, {OL}")
        a("v_lshrrev_b32 v29, 1, v28"); a(f"v_lshlrev_b32 v{vOW}, 4, v29"); a("v_and_b32 v29, 1, v28"); a(f"v_lshl_add_u32 v{vOW}, v29, 2, v{vOW}")
        a("v_lshrrev_b32 v29, 5, v0"); a(f"v_lshl_add_u32 v{vOW}, v29, 1, v{vOW}"); a(f"v_add_u32 v{vOW}, s73, v{vOW}")
        a(f"v_lshlrev_b32 v{vOR}, 4, v{vG}"); a(f"v_add_u32 v{vOR}, {OL}, v{vOR}")
        a(f"s_lshl_b32 s73, {sB}, 6"); a(f"s_lshl_b32 s74, {sWAVE}, 4"); a("s_add_u32 s73, s73, s74"); a("s_lshl_b32 s73, s73, 12")
        a(f"s_lshl_b32 s74, {sP}, 6"); a("s_add_u32 s73, s73, s74"); a(f"s_add_u32 s73, s73, {IN2}")
        a(f"v_lshrrev_b32 v28, 2, v0"); a(f"v_lshlrev_b32 v{vA2}, 12, v28"); a("v_and_b32 v29, 3, v0")
        a(f"v_lshl_add_u32 v{vA2}, v29, 4, v{vA2}"); a(f"v_add_u32 v{vA2}, s73, v{vA2}")
        a("v_and_b32 v30, 7, v28"); a("v_lshlrev_b32 v31, 10, v28"); a("v_lshl_add_u32 v31, v29, 3, v31")
        a(f"s_lshl_b32 s73, {sWAVE}, 8"); a(f"s_add_u32 s73, s73, {WOB}"); a("v_add_u32 v31, s73, v31")
        for blk in range(8):
            a(f"v_xor_b32 v32, {blk}, v30"); a(f"v_lshl_add_u32 v{vWB+blk}, v32, 5, v31")
        VF, ACC0, ACC1, WF = 28, 44, 48, 164
        for G in range(16):
            last = (G == 15)
            self.wait_land(thr[("V", G)], vT, f"v{vFB}", sL, sleep=0 if G >= 14 else 1)
            if last: self.stamp(6)
            base = (G % 8) * SLOT
            a(f"ds_read_b64_tr_b16 {v(VF,2)}, v{vVA0} offset:{base}")
            a(f"ds_read_b64_tr_b16 {v(VF+2,2)}, v{vVA0} offset:{base+4096}")
            a(f"ds_read_b64_tr_b16 {v(VF+4,2)}, v{vVA1} offset:{base}")
            a(f"ds_read_b64_tr_b16 {v(VF+6,2)}, v{vVA1} offset:{base+4096}")
            a("s_waitcnt lgkmcnt(2)")
            a(f"v_mfma_f32_16x16x32_bf16 {v(ACC0,4)}, {v(VF,4)}, {v(PFR+4*G,4)}, {'0' if G == 0 else v(ACC0,4)}")
            a("s_waitcnt lgkmcnt(0)")
            a(f"v_mfma_f32_16x16x32_bf16 {v(ACC1,4)}, {v(VF+4,4)}, {v(PFR+4*G,4)}, {'0' if G == 0 else v(ACC1,4)}")
            if G < 8:
                a(f"s_lshl_b32 s72, {sWAVE}, 2"); a(f"s_add_u32 s72, s72, {FB + F_VD}")
                a(f"v_mov_b32 v5, s72"); a(f"v_mov_b32 v6, {G+1}")
                a("ds_write_b32 v5, v6")
            if G == 9:
                n = 0
                for ks in range(2):
                    for blk in range(8):
                        for u in range(2):
                            a(f"ds_read_b64_tr_b16 {v(WF + (ks*8+blk)*4 + 2*u, 2)}, v{vWB+blk} offset:{(32*ks+16*u)*1024}")
                            n += 1
                            if n % 8 == 0: a("s_waitcnt lgkmcnt(0)")
        PB = 36
        for k, off in ((0, 0), (2, 1)):
            a(f"v_mov_b32 v{PB+k}, v{ACC0+off}")
            a(f"v_mov_b32_dpp v{PB+k}, v{ACC0+2+off} quad_perm:[0,1,2,3] row_mask:0xf bank_mask:0x2")
            a(f"v_mov_b32_dpp v{PB+k}, v{ACC1+off} quad_perm:[0,1,2,3] row_mask:0xf bank_mask:0x4")
            a(f"v_mov_b32_dpp v{PB+k}, v{ACC1+2+off} quad_perm:[0,1,2,3] row_mask:0xf bank_mask:0x8")
        a(f"v_and_or_b32 v{PB}, v{PB}, {sMASK}, v{vT8}"); a(f"v_mov_b32 v{PB+1}, v{vTag}")
        a(f"v_and_or_b32 v{PB+2}, v{PB+2}, {sMASK}, v{vT8}"); a(f"v_mov_b32 v{PB+3}, v{vTag}")
        a(f"global_store_dwordx4 v{vA1}, {v(PB,4)}, s[30:31] sc1")
        self.stamp(7)
        self.spin_lds(F_W, 1, vT, "s77", f"v{vFB}", sleep=0)
        a("v_lshlrev_b32 v28, 2, v0"); a(f"v_add_u32 v28, {WL}, v28")
        a("ds_read_b32 v29, v28")
        if c.ack1: a("s_waitcnt vmcnt(0)")
        self.poll([f"global_load_dwordx4 v[40:43], v{vP1}, s[30:31] sc1"], [("t32", 41), ("t32", 43), ("t8", 40, 42, 44)])
        self.stamp(8)
        a("s_waitcnt lgkmcnt(0)")
        a("v_mul_f32 v40, v40, v29"); a("v_mul_f32 v42, v42, v29")
        a("v_permlane32_swap_b32 v40, v42"); a("v_add_f32 v40, v40, v42")
        self.red_x16("v_add_f32", 40, 41)
        self.red_row("v_add_f32", 40, [8])
        a("v_cvt_pk_bf16_f32 v40, v40, v40")
        a(f"ds_write_b16 v{vOW}, v40")
        a("s_waitcnt lgkmcnt(0)")
        a("s_barrier")
        a(f"ds_read_b128 v[40:43], v{vOR}"); a(f"ds_read_b128 v[44:47], v{vOR} offset:64")
        WA = 48
        a("s_waitcnt lgkmcnt(1)")
        for blk in range(8):
            a(f"v_mfma_f32_16x16x32_bf16 {v(WA+4*blk,4)}, v[40:43], {v(WF+4*blk,4)}, 0")
        a("s_waitcnt lgkmcnt(0)")
        for blk in range(8):
            a(f"v_mfma_f32_16x16x32_bf16 {v(WA+4*blk,4)}, v[44:47], {v(WF+32+4*blk,4)}, {v(WA+4*blk,4)}")
        for k, b0 in ((0, 0), (2, 4)):
            a(f"v_mov_b32 v{PB+k}, v{WA+4*b0}")
            for g in range(1, 4):
                a(f"v_mov_b32_dpp v{PB+k}, v{WA+4*(b0+g)} quad_perm:[0,1,2,3] row_mask:{hex(1<<g)} bank_mask:0xf")
        a(f"v_and_or_b32 v{PB}, v{PB}, {sMASK}, v{vT8}"); a(f"v_and_or_b32 v{PB+2}, v{PB+2}, {sMASK}, v{vT8}")
        a(f"global_store_dwordx4 v{vA2}, {v(PB,4)}, s[30:31] sc1")
        self.stamp(9)
        self.stamp_flush_c()
        a("s_endpgm")

    def stamp_flush_c(self):
        if not self.c.stamps: return
        a = self.a
        L = a.newlabel("nost")
        a(f"s_cmp_lg_u32 {sWAVE}, 0"); a(f"s_cbranch_scc1 {L}")
        self.stamp_flush(0, 10)
        a(f"{L}:")

    def build(self):
        c = self.c
        a = self.a
        self.prologue()
        self.compute()
        self.loader()
        self.service()
        body = a.finalize()
        hdr = open(os.path.join(os.path.dirname(os.path.abspath(__file__)), "header.txt")).read()
        out = hdr + f"; @launch grid=(256,1,1) block=(384,1,1) lds={LDS_BYTES}\n"
        out += '.amdgcn_target "amdgcn-amd-amdhsa--gfx950"\n.text\n'
        out += f".globl {KNAME}\n.p2align 8\n.type {KNAME},@function\n{KNAME}:\n"
        out += body
        out += f""".section .rodata,"a"
.p2align 6
.amdhsa_kernel {KNAME}
  .amdhsa_next_free_vgpr 232
  .amdhsa_next_free_sgpr 102
  .amdhsa_accum_offset 232
  .amdhsa_group_segment_fixed_size 0
  .amdhsa_kernarg_size 96
  .amdhsa_user_sgpr_count 2
  .amdhsa_user_sgpr_kernarg_segment_ptr 1
  .amdhsa_system_sgpr_workgroup_id_x 1
.end_amdhsa_kernel
"""
        return out

if __name__ == "__main__":
    import argparse
    ap = argparse.ArgumentParser()
    ap.add_argument("out")
    ap.add_argument("opts", nargs="*")
    args = ap.parse_args()
    kw = {}
    for o in args.opts:
        k, val = o.split("=")
        if val in ("True", "False"): val = (val == "True")
        else:
            try: val = int(val)
            except ValueError: pass
        kw[k] = val
    open(args.out, "w").write(Gen(Cfg(**kw)).build())
```
